```python
import torch

def _softmax(x, axis=-1):
    return torch.softmax(x, dim=axis)
def _gelu(x):
    return torch.nn.functional.gelu(x, approximate="tanh")
def _silu(x):
    return torch.nn.functional.silu(x)
def _sigmoid(x):
    return torch.sigmoid(x)
def _layernorm(x, axis=-1, eps=1e-5):
    m = x.mean(dim=axis, keepdim=True)
    v = x.var(dim=axis, keepdim=True, unbiased=False)
    return (x - m) / torch.sqrt(v + eps)
def _scatter_add(tgt, idx, src, axis=0):
    return tgt.clone().index_add_(axis, idx, src)
def _segment_sum(src, seg, n):
    out = torch.zeros((n,) + src.shape[1:], dtype=src.dtype)
    return out.index_add_(0, seg, src)
def _pad(x, pw):
    flat = tuple(v for pair in reversed(pw) for v in pair)
    return torch.nn.functional.pad(x, flat)

kernel_name = 'gated_mix__grouped_kv_mqa__dense_activation_relu__prompt'

def setup_inputs():

    _w = (lambda a: (lambda t: t.to(torch.bfloat16) if t.is_floating_point() else t)(torch.as_tensor(a)))
    def _A_setup():
        B, S, D, H = 1, 2048, 512, 32
        Dh = D // H
        return {
            "x": _w((lambda *s: torch.randn(*s, dtype=torch.bfloat16) * 0.05)(B, S, D)),
            "wq": _w((lambda *s: torch.randn(*s, dtype=torch.bfloat16) * 0.8)(D, H * Dh)),
            "wk": _w((lambda *s: torch.randn(*s, dtype=torch.bfloat16) * 0.8)(D, Dh)),
            "wv": _w((lambda *s: torch.randn(*s, dtype=torch.bfloat16) * 0.2)(D, Dh)),
            "wo": _w((lambda *s: torch.randn(*s, dtype=torch.bfloat16) * 0.2)(H * Dh, D)),
        }
    _A_in = _A_setup()

    def _B_setup():
        B, S, D, Dff = 1, 2048, 512, 1792
        return {
            "x": _w((lambda *s: torch.randn(*s, dtype=torch.bfloat16) * 0.05)(B, S, D)),
            "w1": _w((lambda *s: torch.randn(*s, dtype=torch.bfloat16) * 0.05)(D, Dff)),
            "w2": _w((lambda *s: torch.randn(*s, dtype=torch.bfloat16) * 0.05)(Dff, D)),
        }
    _B_in = _B_setup()

    return {
        "A_x": _A_in["x"],
        "A_wq": _A_in["wq"],
        "A_wk": _A_in["wk"],
        "A_wv": _A_in["wv"],
        "A_wo": _A_in["wo"],
        "B_x": _B_in["x"],
        "B_w1": _B_in["w1"],
        "B_w2": _B_in["w2"],
        "gate_w": _w((lambda *s: torch.randn(*s, dtype=torch.bfloat16) * 0.05)(512) * 16.0),
    }

def reference(A_x, A_wq, A_wk, A_wv, A_wo, B_x, B_w1, B_w2, gate_w):
    def _A_ref(x, wq, wk, wv, wo):
        B, S, D = x.shape
        H = 32
        Dh = D // H
        q = (lambda x, *d: x.permute(*d))((x @ wq).reshape(B, S, H, Dh), 0, 2, 1, 3)
        k = x @ wk
        v = x @ wv
        scores = torch.einsum("bhqd,bkd->bhqk", q, k) * (Dh ** -0.5)
        p = _softmax(scores, axis=-1)
        o = torch.einsum("bhqk,bkd->bhqd", p, v)
        return (lambda x, *d: x.permute(*d))(o, 0, 2, 1, 3).reshape(B, S, H * Dh) @ wo

    def _B_ref(x, w1, w2):
        h = torch.einsum("bsd,df->bsf", x, w1)
        zero = torch.zeros_like(h)
        h = torch.maximum(h, zero)
        return torch.einsum("bsf,fd->bsd", h, w2)

    x = A_x
    g = _sigmoid((x * gate_w).sum(-1, keepdims=True))
    a = _A_ref(x, A_wq, A_wk, A_wv, A_wo)
    b = _B_ref(x, B_w1, B_w2)
    return g * a + (1 - g) * b
```

```python
class Asm:
    def __init__(self):
        self.lines = []
        self.nlabel = 0
    def __call__(self, s):
        for l in s.split("\n"):
            self.lines.append("    " + l.strip() if l.strip() and not l.strip().endswith(":") else l.strip())
    def label(self, name):
        self.lines.append(name + ":")
    def newlabel(self, base="L"):
        self.nlabel += 1
        return "%s_%d" % (base, self.nlabel)
    def T(self, k):
        self.lines.append("    ;@T%d" % k)
    def comment(self, s):
        self.lines.append("    ; " + s)
    def text(self):
        return "\n".join(self.lines) + "\n"

def vr(a, n=1):
    return "v%d" % a if n == 1 else "v[%d:%d]" % (a, a + n - 1)
def sr(a, n=1):
    return "s%d" % a if n == 1 else "s[%d:%d]" % (a, a + n - 1)

WS_QF   = 0x000000
WS_KF   = 0x200000
WS_VF   = 0x210000
WS_GATE = 0x220000
WS_QN   = 0x224000
WS_KN   = 0x228000
WS_FLAG = 0x230000
WS_HF   = 0x400000
WS_OF   = 0xC00000
WS_BF   = 0x1000000
WS_DBG  = 0x2000000

def kernel_desc(name, nvgpr, nsgpr=102, accum=None):
    if accum is None:
        accum = (nvgpr + 3) // 4 * 4
    return """.section .rodata,"a"
.p2align 6
.amdhsa_kernel %s
  .amdhsa_next_free_vgpr %d
  .amdhsa_next_free_sgpr %d
  .amdhsa_accum_offset %d
  .amdhsa_group_segment_fixed_size 0
  .amdhsa_kernarg_size 96
  .amdhsa_user_sgpr_count 2
  .amdhsa_user_sgpr_kernarg_segment_ptr 1
  .amdhsa_system_sgpr_workgroup_id_x 1
.end_amdhsa_kernel
""" % (name, nvgpr, nsgpr, accum)

def kernel_head(name):
    return """.text
.globl %s
.p2align 8
.type %s,@function
%s:
""" % (name, name, name)

def srd(a, dst, lo, hi, nbytes):
    a("s_mov_b32 s%d, s%d" % (dst, lo))
    a("s_mov_b32 s%d, s%d" % (dst + 1, hi))
    a("s_mov_b32 s%d, 0x%x" % (dst + 2, nbytes))
    a("s_mov_b32 s%d, 0x00020000" % (dst + 3))

def wave_max(a, v, n=1):
    regs = v if isinstance(v, (list, tuple)) else [v]
    for ctrl in ("row_shr:1 row_mask:0xf", "row_shr:2 row_mask:0xf", "row_shr:4 row_mask:0xf", "row_shr:8 row_mask:0xf",
                 "row_bcast:15 row_mask:0xa", "row_bcast:31 row_mask:0xc"):
        a("s_nop 1")
        for r in regs:
            a("v_max_f32_dpp v%d, v%d, v%d %s bank_mask:0xf" % (r, r, r, ctrl))

def stamp(a, slot, sreg_ws_lo, tmp=90):
    pass
```

```python
from asm import *

MAIN = "gated_mix__grouped_kv_mqa__dense_activation_relu__prompt_kernel"
WS_BYTES = 0x10000000
LOG2E = 1.4426950408889634

def f32hex(x):
    import struct
    return "0x%08x" % struct.unpack("<I", struct.pack("<f", x))[0]

def wg_prologue(a, lend, nwg=256):
    a("s_cmp_ge_u32 s2, %d" % nwg)
    a("s_cbranch_scc1 %s" % lend)
    a("v_lshrrev_b32 v1, 6, v0")
    a("s_and_b32 s4, s2, 7")
    a("v_readfirstlane_b32 s3, v1")
    a("s_lshr_b32 s6, s2, 6")
    a("s_lshl_b32 s6, s6, 3")
    a("s_add_u32 s4, s4, s6")
    a("s_lshr_b32 s5, s2, 3")
    a("s_and_b32 s5, s5, 7")
    a("v_and_b32 v1, 63, v0")

def dma(a, voff, srdreg, soff, m0expr, imm=0):
    a("s_mov_b32 m0, %s" % m0expr)
    a("s_nop 0")
    a("buffer_load_dwordx4 %s, %s, %s offen lds%s" % (voff, srdreg, soff, (" offset:%d" % imm) if imm else ""))
```

```python
import sys, importlib
sys.path.insert(0, "gen")
from common import *

import os, re
STAMP = os.environ.get("STAMP")
def add_stamps(body, infos):
    names = []
    for k in infos:
        if k["name"] not in names: names.append(k["name"])
    out = []
    cur = None; idx = -1
    lines = body.split("\n")
    def stub(idx):
        o = ["STAMP_%d:" % idx,
          "    s_mov_b64 exec, -1",
          "    s_memrealtime s[96:97]",
          "    s_memtime s[86:87]",
          "    s_load_dwordx2 s[98:99], s[0:1], 88",
          "    s_waitcnt lgkmcnt(0)",
          "    s_mov_b32 s88, s98", "    s_mov_b32 s89, s99", "    s_mov_b32 s90, 0x10000000", "    s_mov_b32 s91, 0x00020000",
          "    s_lshl_b32 s92, s2, 4", "    s_add_u32 s92, s92, s93", "    s_lshl_b32 s92, s92, 6",
          "    s_add_u32 s92, s92, %d" % (WS_DBG + idx * 0x80000),
          "    v_mov_b32 v2, s94", "    v_mov_b32 v3, s95", "    v_mov_b32 v4, s96", "    v_mov_b32 v5, s97"]
        for k in range(12):
            o.append("    s_sub_u32 s%d, s%d, s62" % (64 + 2 * k, 64 + 2 * k))
            o.append("    v_mov_b32 v%d, s%d" % (6 + k, 64 + 2 * k))
        o += ["    v_mov_b32 v1, 0",
          "    s_mov_b64 exec, 1",
          "    buffer_store_dwordx4 v[2:5], v1, s[88:91], s92 offen",
          "    buffer_store_dwordx4 v[6:9], v1, s[88:91], s92 offen offset:16",
          "    buffer_store_dwordx4 v[10:13], v1, s[88:91], s92 offen offset:32",
          "    buffer_store_dwordx4 v[14:17], v1, s[88:91], s92 offen offset:48",
          "    s_endpgm"]
        return o
    for l in lines:
        st = l.strip()
        m = re.match(r"^(\w+_kernel):$", st)
        if m or re.search(r"\n(\w+_kernel):\s*$", l):
            pass
        if st == ".text" and idx >= 0:
            out += stub(idx)
        if st.endswith("_kernel:"):
            idx += 1
            out.append(l)
            out.append("    s_memrealtime s[94:95]")
            out.append("    s_memtime s[62:63]")
            for k in range(12):
                out.append("    s_mov_b32 s%d, 0" % (64 + 2 * k))
            out.append("    v_lshrrev_b32 v1, 6, v0")
            out.append("    v_readfirstlane_b32 s93, v1")
            continue
        m = re.match(r";@T(\d+)$", st)
        if m:
            out.append("    s_memtime s[%d:%d]" % (64 + 2 * int(m.group(1)), 65 + 2 * int(m.group(1))))
            continue
        if st == "s_endpgm":
            out.append("    s_branch STAMP_%d" % idx)
            continue
        out.append(l)
    out += stub(idx)
    return "\n".join(out) + "\n"

HEADER = """; gated_mix (MQA attention + ReLU FFN, sigmoid gate) for gfx950 -- generated by hand-written generator scripts
"""

def build(kernels, path):
    a = Asm()
    infos = []
    for f, name, kw in kernels:
        infos.append(f(a, name, **kw))
    txt = HEADER
    for k in infos:
        txt += "; @launch kernel=%s grid=(%d,1,1) block=(%d,1,1) lds=%d\n" % (k["name"], k["grid"], k["block"], k["lds"])
    txt += '.amdgcn_target "amdgcn-amd-amdhsa--gfx950"\n'
    body = a.text()
    if STAMP:
        body = add_stamps(body, infos)
    txt += body
    seen = set()
    for k in infos:
        if k["name"] in seen: continue
        seen.add(k["name"])
        txt += kernel_desc(k["name"], k["nvgpr"], accum=k.get("accum"))
    open(path, "w").write(txt)
    return infos

if __name__ == "__main__":
    cfg = sys.argv[1]
    out = sys.argv[2]
    m = importlib.import_module(cfg)
    build(m.kernels(), out)
```

```python
import sys, importlib
sys.path.insert(0, "gen")
from common import *

import os, re
STAMP = os.environ.get("STAMP")
def add_stamps(body, infos):
    names = []
    for k in infos:
        if k["name"] not in names: names.append(k["name"])
    out = []
    cur = None; idx = -1
    lines = body.split("\n")
    def stub(idx):
        o = ["STAMP_%d:" % idx,
          "    s_mov_b64 exec, -1",
          "    s_memrealtime s[96:97]",
          "    s_memtime s[86:87]",
          "    s_load_dwordx2 s[98:99], s[0:1], 88",
          "    s_waitcnt lgkmcnt(0)",
          "    s_mov_b32 s88, s98", "    s_mov_b32 s89, s99", "    s_mov_b32 s90, 0x10000000", "    s_mov_b32 s91, 0x00020000",
          "    s_lshl_b32 s92, s2, 4", "    s_add_u32 s92, s92, s93", "    s_lshl_b32 s92, s92, 6",
          "    s_add_u32 s92, s92, %d" % (WS_DBG + idx * 0x80000),
          "    v_mov_b32 v2, s94", "    v_mov_b32 v3, s95", "    v_mov_b32 v4, s96", "    v_mov_b32 v5, s97"]
        for k in range(12):
            o.append("    s_sub_u32 s%d, s%d, s62" % (64 + 2 * k, 64 + 2 * k))
            o.append("    v_mov_b32 v%d, s%d" % (6 + k, 64 + 2 * k))
        o += ["    v_mov_b32 v1, 0",
          "    s_mov_b64 exec, 1",
          "    buffer_store_dwordx4 v[2:5], v1, s[88:91], s92 offen",
          "    buffer_store_dwordx4 v[6:9], v1, s[88:91], s92 offen offset:16",
          "    buffer_store_dwordx4 v[10:13], v1, s[88:91], s92 offen offset:32",
          "    buffer_store_dwordx4 v[14:17], v1, s[88:91], s92 offen offset:48",
          "    s_endpgm"]
        return o
    for l in lines:
        st = l.strip()
        m = re.match(r"^(\w+_kernel):$", st)
        if m or re.search(r"\n(\w+_kernel):\s*$", l):
            pass
        if st == ".text" and idx >= 0:
            out += stub(idx)
        if st.endswith("_kernel:"):
            idx += 1
            out.append(l)
            out.append("    s_memrealtime s[94:95]")
            out.append("    s_memtime s[62:63]")
            for k in range(12):
                out.append("    s_mov_b32 s%d, 0" % (64 + 2 * k))
            out.append("    v_lshrrev_b32 v1, 6, v0")
            out.append("    s_nop 3")
            out.append("    v_readfirstlane_b32 s93, v1")
            continue
        m = re.match(r";@T(\d+)$", st)
        if m:
            out.append("    s_memtime s[%d:%d]" % (64 + 2 * int(m.group(1)), 65 + 2 * int(m.group(1))))
            continue
        if st == "s_endpgm":
            out.append("    s_branch STAMP_%d" % idx)
            continue
        out.append(l)
    out += stub(idx)
    return "\n".join(out) + "\n"

HEADER = """; gated_mix (MQA attention + ReLU FFN, sigmoid gate) for gfx950 -- generated by hand-written generator scripts
"""

def build(kernels, path):
    a = Asm()
    infos = []
    for f, name, kw in kernels:
        infos.append(f(a, name, **kw))
    txt = HEADER
    for k in infos:
        if os.environ.get("PLAIN") and len(infos) == 1:
            txt += "; @launch grid=(%d,1,1) block=(%d,1,1) lds=%d\n" % (k["grid"], k["block"], k["lds"])
        else:
            txt += "; @launch kernel=%s grid=(%d,1,1) block=(%d,1,1) lds=%d\n" % (k["name"], k["grid"], k["block"], k["lds"])
    txt += '.amdgcn_target "amdgcn-amd-amdhsa--gfx950"\n'
    body = a.text()
    if STAMP:
        body = add_stamps(body, infos)
    txt += body
    seen = set()
    for k in infos:
        if k["name"] in seen: continue
        seen.add(k["name"])
        txt += kernel_desc(k["name"], k["nvgpr"], accum=k.get("accum"))
    open(path, "w").write(txt)
    return infos

if __name__ == "__main__":
    cfg = sys.argv[1]
    out = sys.argv[2]
    m = importlib.import_module(cfg)
    build(m.kernels(), out)
```

```python
class Asm:
    def __init__(self):
        self.lines = []
        self.nlabel = 0
    def __call__(self, s):
        for l in s.split("\n"):
            self.lines.append("    " + l.strip() if l.strip() and not l.strip().endswith(":") else l.strip())
    def label(self, name):
        self.lines.append(name + ":")
    def newlabel(self, base="L"):
        self.nlabel += 1
        return "%s_%d" % (base, self.nlabel)
    def T(self, k, g=0):
        import os
        if int(os.environ.get("TG", "0")) != g: return
        self.lines.append("    ;@T%d" % k)
    def TV(self, k, sreg, g=0):
        import os
        if int(os.environ.get("TG", "0")) != g: return
        self.lines.append("    ;@V%d %s" % (k, sreg))
    def comment(self, s):
        self.lines.append("    ; " + s)
    def text(self):
        return "\n".join(self.lines) + "\n"

def vr(a, n=1):
    return "v%d" % a if n == 1 else "v[%d:%d]" % (a, a + n - 1)
def sr(a, n=1):
    return "s%d" % a if n == 1 else "s[%d:%d]" % (a, a + n - 1)

WS_QF   = 0x000000
WS_KF   = 0x200000
WS_VF   = 0x210000
WS_GATE = 0x220000
WS_QN   = 0x224000
WS_KN   = 0x228000
WS_FLAG = 0x230000
WS_HF   = 0x400000
WS_OF   = 0xC00000
WS_BF   = 0x1000000
WS_DBG  = 0x2000000

def kernel_desc(name, nvgpr, nsgpr=102, accum=None):
    if accum is None:
        accum = (nvgpr + 3) // 4 * 4
    return """.section .rodata,"a"
.p2align 6
.amdhsa_kernel %s
  .amdhsa_next_free_vgpr %d
  .amdhsa_next_free_sgpr %d
  .amdhsa_accum_offset %d
  .amdhsa_group_segment_fixed_size 0
  .amdhsa_kernarg_size 96
  .amdhsa_user_sgpr_count 2
  .amdhsa_user_sgpr_kernarg_segment_ptr 1
  .amdhsa_system_sgpr_workgroup_id_x 1
.end_amdhsa_kernel
""" % (name, nvgpr, nsgpr, accum)

def kernel_head(name):
    return """.text
.globl %s
.p2align 8
.type %s,@function
%s:
""" % (name, name, name)

def srd(a, dst, lo, hi, nbytes):
    a("s_mov_b32 s%d, s%d" % (dst, lo))
    a("s_mov_b32 s%d, s%d" % (dst + 1, hi))
    a("s_mov_b32 s%d, 0x%x" % (dst + 2, nbytes))
    a("s_mov_b32 s%d, 0x00020000" % (dst + 3))

def wave_max(a, v, n=1):
    regs = v if isinstance(v, (list, tuple)) else [v]
    for ctrl in ("row_shr:1 row_mask:0xf", "row_shr:2 row_mask:0xf", "row_shr:4 row_mask:0xf", "row_shr:8 row_mask:0xf",
                 "row_bcast:15 row_mask:0xa", "row_bcast:31 row_mask:0xc"):
        a("s_nop 1")
        for r in regs:
            a("v_max_f32_dpp v%d, v%d, v%d %s bank_mask:0xf" % (r, r, r, ctrl))

def stamp(a, slot, sreg_ws_lo, tmp=90):
    pass
```

```python
from asm import *

MAIN = "gated_mix__grouped_kv_mqa__dense_activation_relu__prompt_kernel"
WS_BYTES = 0x10000000
LOG2E = 1.4426950408889634

def f32hex(x):
    import struct
    return "0x%08x" % struct.unpack("<I", struct.pack("<f", x))[0]

def wg_prologue(a, lend, nwg=256):
    a("s_cmp_ge_u32 s2, %d" % nwg)
    a("s_cbranch_scc1 %s" % lend)
    a("v_lshrrev_b32 v1, 6, v0")
    a("s_and_b32 s4, s2, 7")
    a("v_readfirstlane_b32 s3, v1")
    a("s_lshr_b32 s6, s2, 6")
    a("s_lshl_b32 s6, s6, 3")
    a("s_add_u32 s4, s4, s6")
    a("s_lshr_b32 s5, s2, 3")
    a("s_and_b32 s5, s5, 7")
    import os
    if "map2" in os.environ.get("XP", ""):
        a("s_lshr_b32 s4, s2, 3")
        a("s_and_b32 s5, s2, 7")
    a("v_and_b32 v1, 63, v0")

def dma(a, voff, srdreg, soff, m0expr, imm=0):
    a("s_mov_b32 m0, %s" % m0expr)
    a("s_nop 0")
    a("buffer_load_dwordx4 %s, %s, %s offen lds%s" % (voff, srdreg, soff, (" offset:%d" % imm) if imm else ""))
```

```python
import sys, importlib
sys.path.insert(0, "gen")
from common import *

import os, re
STAMP = os.environ.get("STAMP")
def add_stamps(body, infos):
    names = []
    for k in infos:
        if k["name"] not in names: names.append(k["name"])
    out = []
    cur = None; idx = -1
    lines = body.split("\n")
    def stub(idx):
        o = ["STAMP_%d:" % idx,
          "    s_mov_b64 exec, -1",
          "    s_memrealtime s[96:97]",
          "    s_memtime s[86:87]",
          "    s_load_dwordx2 s[98:99], s[0:1], 88",
          "    s_waitcnt lgkmcnt(0)",
          "    s_mov_b32 s88, s98", "    s_mov_b32 s89, s99", "    s_mov_b32 s90, 0x10000000", "    s_mov_b32 s91, 0x00020000",
          "    s_lshl_b32 s92, s2, 4", "    s_add_u32 s92, s92, s93", "    s_lshl_b32 s92, s92, 6",
          "    s_add_u32 s92, s92, %d" % (WS_DBG + idx * 0x80000),
          "    s_getreg_b32 s88, hwreg(HW_REG_XCC_ID)", "    s_and_b32 s88, s88, 15", "    s_lshl_b32 s88, s88, 24", "    s_or_b32 s95, s95, s88", "    s_mov_b32 s88, s98",
          "    v_mov_b32 v2, s94", "    v_mov_b32 v3, s95", "    v_mov_b32 v4, s96", "    v_mov_b32 v5, s97"]
        for k in range(12):
            o.append("    s_sub_u32 s%d, s%d, s62" % (64 + 2 * k, 64 + 2 * k))
            o.append("    v_mov_b32 v%d, s%d" % (6 + k, 64 + 2 * k))
        o += ["    v_mov_b32 v1, 0",
          "    s_mov_b64 exec, 1",
          "    buffer_store_dwordx4 v[2:5], v1, s[88:91], s92 offen",
          "    buffer_store_dwordx4 v[6:9], v1, s[88:91], s92 offen offset:16",
          "    buffer_store_dwordx4 v[10:13], v1, s[88:91], s92 offen offset:32",
          "    buffer_store_dwordx4 v[14:17], v1, s[88:91], s92 offen offset:48",
          "    s_endpgm"]
        return o
    for l in lines:
        st = l.strip()
        m = re.match(r"^(\w+_kernel):$", st)
        if m or re.search(r"\n(\w+_kernel):\s*$", l):
            pass
        if st == ".text" and idx >= 0:
            out += stub(idx)
        if st.endswith("_kernel:"):
            idx += 1
            out.append(l)
            out.append("    s_memrealtime s[94:95]")
            out.append("    s_memtime s[62:63]")
            out.append("    s_waitcnt lgkmcnt(0)")
            for k in range(12):
                out.append("    s_mov_b32 s%d, s62" % (64 + 2 * k))
            out.append("    v_lshrrev_b32 v1, 6, v0")
            out.append("    s_nop 3")
            out.append("    v_readfirstlane_b32 s93, v1")
            continue
        m = re.match(r";@T(\d+)$", st)
        if m:
            out.append("    s_memtime s[%d:%d]" % (64 + 2 * int(m.group(1)), 65 + 2 * int(m.group(1))))
            continue
        m = re.match(r";@V(\d+) (\w+)$", st)
        if m:
            out.append("    s_add_u32 s%d, %s, s62" % (64 + 2 * int(m.group(1)), m.group(2)))
            continue
        if st == "s_endpgm":
            out.append("    s_branch STAMP_%d" % idx)
            continue
        out.append(l)
    out += stub(idx)
    return "\n".join(out) + "\n"

HEADER = """; gated_mix (MQA attention + ReLU FFN, sigmoid gate) for gfx950 -- generated by hand-written generator scripts
"""

def build(kernels, path):
    a = Asm()
    infos = []
    for f, name, kw in kernels:
        infos.append(f(a, name, **kw))
    txt = HEADER
    for k in infos:
        if os.environ.get("PLAIN") and len(infos) == 1:
            txt += "; @launch grid=(%d,1,1) block=(%d,1,1) lds=%d\n" % (k["grid"], k["block"], k["lds"])
        else:
            txt += "; @launch kernel=%s grid=(%d,1,1) block=(%d,1,1) lds=%d\n" % (k["name"], k["grid"], k["block"], k["lds"])
    txt += '.amdgcn_target "amdgcn-amd-amdhsa--gfx950"\n'
    body = a.text()
    if STAMP:
        body = add_stamps(body, infos)
    txt += body
    seen = set()
    for k in infos:
        if k["name"] in seen: continue
        seen.add(k["name"])
        txt += kernel_desc(k["name"], k["nvgpr"], accum=k.get("accum"))
    open(path, "w").write(txt)
    return infos

if __name__ == "__main__":
    cfg = sys.argv[1]
    out = sys.argv[2]
    m = importlib.import_module(cfg)
    build(m.kernels(), out)
```
